```python
import torch

def _softmax(x, axis=-1):
    return torch.softmax(x, dim=axis)
def _gelu(x):
    return torch.nn.functional.gelu(x, approximate="tanh")
def _silu(x):
    return torch.nn.functional.silu(x)
def _sigmoid(x):
    return torch.sigmoid(x)
def _layernorm(x, axis=-1, eps=1e-5):
    m = x.mean(dim=axis, keepdim=True)
    v = x.var(dim=axis, keepdim=True, unbiased=False)
    return (x - m) / torch.sqrt(v + eps)
def _scatter_add(tgt, idx, src, axis=0):
    return tgt.clone().index_add_(axis, idx, src)
def _segment_sum(src, seg, n):
    out = torch.zeros((n,) + src.shape[1:], dtype=src.dtype)
    return out.index_add_(0, seg, src)
def _pad(x, pw):
    flat = tuple(v for pair in reversed(pw) for v in pair)
    return torch.nn.functional.pad(x, flat)

kernel_name = 'sequential_preLN__grouped_kv_mqa__glu_gated_swiglu__prompt'

def setup_inputs():

    _w = (lambda a: (lambda t: t.to(torch.bfloat16) if t.is_floating_point() else t)(torch.as_tensor(a)))
    def _A_setup():
        B, S, D, H = 1, 2048, 512, 32
        Dh = D // H
        return {
            "x": _w((lambda *s: torch.randn(*s, dtype=torch.bfloat16) * 0.05)(B, S, D)),
            "wq": _w((lambda *s: torch.randn(*s, dtype=torch.bfloat16) * 0.05)(D, H * Dh)),
            "wk": _w((lambda *s: torch.randn(*s, dtype=torch.bfloat16) * 0.05)(D, Dh)),
            "wv": _w((lambda *s: torch.randn(*s, dtype=torch.bfloat16) * 0.05)(D, Dh)),
            "wo": _w((lambda *s: torch.randn(*s, dtype=torch.bfloat16) * 0.05)(H * Dh, D)),
        }
    _A_in = _A_setup()

    def _B_setup():
        B, S, D, F = 1, 2048, 512, 1376
        return {
            "x": _w((lambda *s: torch.randn(*s, dtype=torch.bfloat16) * 0.05)(B, S, D)),
            "w1": _w((lambda *s: torch.randn(*s, dtype=torch.bfloat16) * 0.4)(D, F) * (2.0 / D) ** 0.5),
            "w3": _w((lambda *s: torch.randn(*s, dtype=torch.bfloat16) * 0.4)(D, F) * (2.0 / D) ** 0.5),
            "w2": _w((lambda *s: torch.randn(*s, dtype=torch.bfloat16) * 0.4)(F, D) * (2.0 / F) ** 0.5),
        }
    _B_in = _B_setup()

    return {
        "A_x": _A_in["x"],
        "A_wq": _A_in["wq"],
        "A_wk": _A_in["wk"],
        "A_wv": _A_in["wv"],
        "A_wo": _A_in["wo"],
        "B_x": _B_in["x"],
        "B_w1": _B_in["w1"],
        "B_w3": _B_in["w3"],
        "B_w2": _B_in["w2"],
    }

def reference(A_x, A_wq, A_wk, A_wv, A_wo, B_x, B_w1, B_w3, B_w2):
    def _A_ref(x, wq, wk, wv, wo):
        B, S, D = x.shape
        H = 32
        Dh = D // H
        q = (lambda x, *d: x.permute(*d))((x @ wq).reshape(B, S, H, Dh), 0, 2, 1, 3)
        k = x @ wk
        v = x @ wv
        scores = torch.einsum("bhqd,bkd->bhqk", q, k) * (Dh ** -0.5)
        p = _softmax(scores, axis=-1)
        o = torch.einsum("bhqk,bkd->bhqd", p, v)
        return (lambda x, *d: x.permute(*d))(o, 0, 2, 1, 3).reshape(B, S, H * Dh) @ wo

    def _B_ref(x, w1, w3, w2):
        gate = torch.einsum("bsd,df->bsf", x, w1)
        up = torch.einsum("bsd,df->bsf", x, w3)
        h = _silu(gate) * up
        out = torch.einsum("bsf,fd->bsd", h, w2)
        return out

    x = A_x
    h = x + _A_ref(_layernorm(x, axis=-1), A_wq, A_wk, A_wv, A_wo)
    h2 = h + _B_ref(_layernorm(h, axis=-1), B_w1, B_w3, B_w2)
    return h2
```

```python
import sys
KN = 'sequential_preLN__grouped_kv_mqa__glu_gated_swiglu__prompt'
S, D, F = 2048, 512, 1376
WS_Q, WS_K, WS_V, WS_O, WS_H, WS_G = 0, 0x200000, 0x210000, 0x300000, 0x500000, 0x700000
QSCALE = 0.25 * 1.4426950408889634
import struct
def fbits(x): return struct.unpack('<I', struct.pack('<f', x))[0]

class Asm:
    def __init__(self): self.lines = []
    def __call__(self, s): self.lines.append('  ' + s)
    def label(self, l): self.lines.append(l + ':')
    def raw(self, s): self.lines.append(s)
    def text(self): return '\n'.join(self.lines) + '\n'

def srd(a, d, kofs, add, size):
    a(f's_load_dwordx2 s[{d}:{d+1}], s[0:1], {kofs}')
    return (d, add, size)
def srd_fin(a, t):
    d, add, size = t
    if add:
        a(f's_add_u32 s{d}, s{d}, {add}')
        a(f's_addc_u32 s{d+1}, s{d+1}, 0')
    a(f's_mov_b32 s{d+2}, {size}')
    a(f's_mov_b32 s{d+3}, 0x00020000')

ASL64, ASL32, WSL = 144, 80, 160

def gemm_body(a, tag, BK, K, AS, WSTR, OS, ln, nmat, epi, kv=False):
    nch = K // BK
    ASL = ASL64 if BK == 64 else ASL32
    ASZ = 64 * ASL
    WSZ = BK * WSL
    STG = ASZ + WSZ * nmat
    STATS = 0
    nkk = BK // 16
    a('v_and_b32 v1, 63, v0')
    a('v_lshrrev_b32 v2, 6, v0')
    a('v_lshrrev_b32 v3, 5, v1')
    a('v_and_b32 v4, 31, v1')
    if ln:
        a('v_lshrrev_b32 v5, 4, v1')
        a('v_lshl_add_u32 v5, v2, 4, v5')
        a('v_add_u32 v5, s24, v5')
        a(f'v_mul_lo_u32 v5, v5, s26')
        a('v_and_b32 v6, 15, v1')
        a('v_lshl_add_u32 v5, v6, 4, v5')
        for j in range(4):
            for m in range(4):
                r = 64 + (j * 4 + m) * 4
                a(f's_mov_b32 s30, {4*j*AS}')
                a(f'buffer_load_dwordx4 v[{r}:{r+3}], v5, s[4:7], s30 offen offset:{256*m}')
        a('s_mov_b32 s31, 0x3f803f80')
        a('s_waitcnt vmcnt(0)')
        for j in range(4):
            s1, s2 = 8 + 2 * j, 9 + 2 * j
            for q in range(16):
                r = 64 + j * 16 + q
                a(f'v_dot2_f32_bf16 v{s1}, v{r}, s31, ' + ('0' if q == 0 else f'v{s1}'))
                a(f'v_dot2_f32_bf16 v{s2}, v{r}, v{r}, ' + ('0' if q == 0 else f'v{s2}'))
        for sh in (1, 2, 4, 8):
            for j in range(8):
                a(f'v_add_f32_dpp v{16+j}, v{8+j}, v{8+j} row_ror:{sh} row_mask:0xf bank_mask:0xf')
            for j in range(8):
                a(f'v_mov_b32 v{8+j}, v{16+j}')
        a(f's_mov_b32 s31, {fbits(1.0/512)}')
        a(f's_mov_b32 s30, {fbits(1e-5)}')
        a('v_lshrrev_b32 v6, 4, v1')
        a('v_lshl_add_u32 v6, v2, 4, v6')
        a('v_lshlrev_b32 v6, 3, v6')
        for j in range(4):
            s1, s2 = 8 + 2 * j, 9 + 2 * j
            a(f'v_mul_f32 v{s1}, s31, v{s1}')
            a(f'v_mul_f32 v{s2}, s31, v{s2}')
            a(f'v_fma_f32 v{s2}, -v{s1}, v{s1}, v{s2}')
            a(f'v_max_f32 v{s2}, 0, v{s2}')
            a(f'v_add_f32 v{s2}, s30, v{s2}')
            a(f'v_rsq_f32 v{s2}, v{s2}')
            a('s_nop 0')
            a(f'v_mul_f32 v{s1}, v{s1}, v{s2}')
            a(f'v_sub_f32 v{s1}, 0, v{s1}')
            a(f'ds_write_b64 v6, v[{s1}:{s2}] offset:{STATS + 32*j}')
        a('s_waitcnt lgkmcnt(0)')
        a('s_barrier')
        a('v_lshrrev_b32 v6, 3, v0')
        a('v_lshlrev_b32 v6, 3, v6')
        a(f'ds_read_b64 v[24:25], v6 offset:{STATS}')
        a(f'ds_read_b64 v[26:27], v6 offset:{STATS+256}')
    if BK == 64:
        a('v_lshrrev_b32 v5, 3, v0')
        a('v_and_b32 v6, 7, v0')
        a('v_add_u32 v7, s24, v5')
        a('v_mul_lo_u32 v7, v7, s26')
        a('v_lshl_add_u32 v8, v6, 4, v7')
        a(f'v_add_u32 v9, {32*AS}, v8')
        a(f'v_mul_u32_u24 v10, {ASL}, v5')
        a('v_lshl_add_u32 v10, v6, 4, v10')
    else:
        a('v_lshrrev_b32 v5, 2, v0')
        a('v_and_b32 v6, 3, v0')
        a('v_add_u32 v7, s24, v5')
        a('v_mul_lo_u32 v7, v7, s26')
        a('v_lshl_add_u32 v8, v6, 4, v7')
        a(f'v_mul_u32_u24 v10, {ASL}, v5')
        a('v_lshl_add_u32 v10, v6, 4, v10')
    if not kv:
        a('v_lshrrev_b32 v5, 3, v0')
        a('v_and_b32 v6, 7, v0')
        a('v_mul_lo_u32 v7, v5, s27')
        a('v_lshl_add_u32 v7, v6, 4, v7')
        a('s_lshl_b32 s28, s25, 1')
        a('v_add_u32 v11, s28, v7')
        a(f'v_add_u32 v12, {32*WSTR}, v11')
        a(f'v_mul_u32_u24 v13, {WSL}, v5')
        a('v_lshl_add_u32 v13, v6, 4, v13')
    else:
        a('v_lshrrev_b32 v5, 2, v0')
        a('v_and_b32 v6, 3, v0')
        a('v_lshlrev_b32 v7, 5, v5')
        a('v_and_b32 v14, 1, v6')
        a('v_lshl_add_u32 v7, v14, 4, v7')
        a('v_mov_b32 v14, 0xfffffff0')
        a('v_cmp_gt_u32 vcc, 2, v6')
        a('s_nop 1')
        a('v_cndmask_b32 v11, v14, v7, vcc')
        a('v_cndmask_b32 v12, v7, v14, vcc')
        a(f'v_mul_u32_u24 v13, {WSL}, v5')
        a('v_lshl_add_u32 v13, v6, 4, v13')
    a('v_lshrrev_b32 v5, 1, v2')
    a('v_and_b32 v6, 1, v2')
    a('v_lshl_add_u32 v7, v5, 5, v4')
    a(f'v_mul_u32_u24 v14, {ASL}, v7')
    a('v_lshl_add_u32 v14, v3, 4, v14')
    a('v_and_b32 v7, 15, v1')
    a('v_lshrrev_b32 v7, 2, v7')
    a('v_lshl_add_u32 v7, v3, 3, v7')
    a(f'v_mul_u32_u24 v15, {WSL}, v7')
    a('v_lshl_add_u32 v15, v6, 6, v15')
    a('v_lshrrev_b32 v7, 4, v1')
    a('v_and_b32 v7, 1, v7')
    a('v_lshl_add_u32 v15, v7, 5, v15')
    a('v_and_b32 v7, 3, v1')
    a('v_lshl_add_u32 v15, v7, 3, v15')
    if ln:
        a('s_waitcnt lgkmcnt(0)')
    npa = 2 if BK == 64 else 1
    npw = BK // 32
    def issue_loads(c):
        for i in range(npa):
            a(f'buffer_load_dwordx4 v[{64+4*i}:{67+4*i}], v{8+i}, s[4:7], 0 offen offset:{c*BK*2}')
        a(f's_mov_b32 s29, {c*BK*WSTR}')
        if not kv:
            for m in range(nmat):
                for i in range(npw):
                    r = 72 + 8 * m + 4 * i
                    a(f'buffer_load_dwordx4 v[{r}:{r+3}], v{11+i}, s[{8+4*m}:{11+4*m}], s29 offen')
        else:
            a('buffer_load_dwordx4 v[72:75], v11, s[8:11], s29 offen')
            a('buffer_load_dwordx4 v[76:79], v12, s[12:15], s29 offen')
    def write_stage(c):
        base = 512 + (c & 1) * STG
        a('s_waitcnt vmcnt(0)')
        if ln:
            for i in range(2):
                for q in range(4):
                    r = 64 + 4 * i + q
                    a(f'v_lshlrev_b32 v28, 16, v{r}')
                    a(f'v_and_b32 v29, 0xffff0000, v{r}')
                    a(f'v_fma_f32 v28, v28, v{25+2*i}, v{24+2*i}')
                    a(f'v_fma_f32 v29, v29, v{25+2*i}, v{24+2*i}')
                    a(f'v_cvt_pk_bf16_f32 v{r}, v28, v29')
        for i in range(npa):
            a(f'ds_write_b128 v10, v[{64+4*i}:{67+4*i}] offset:{base + i*32*ASL}')
        if kv:
            for q in range(4):
                a(f'v_or_b32 v{72+q}, v{72+q}, v{76+q}')
            a(f'ds_write_b128 v13, v[72:75] offset:{base + ASZ}')
        else:
            for m in range(nmat):
                for i in range(npw):
                    r = 72 + 8 * m + 4 * i
                    a(f'ds_write_b128 v13, v[{r}:{r+3}] offset:{base + ASZ + m*WSZ + i*32*WSL}')
        a('s_waitcnt lgkmcnt(0)')
        a('s_barrier')
    def compute(c):
        base = 512 + (c & 1) * STG
        for kk in range(nkk):
            a(f'ds_read_b128 v[{88+4*kk}:{91+4*kk}], v14 offset:{base + kk*32}')
            for m in range(nmat):
                r = 104 + 16 * m + 4 * kk
                o = base + ASZ + m * WSZ + kk * 16 * WSL
                a(f'ds_read_b64_tr_b16 v[{r}:{r+1}], v15 offset:{o}')
                a(f'ds_read_b64_tr_b16 v[{r+2}:{r+3}], v15 offset:{o + 4*WSL}')
        per = 1 + 2 * nmat
        for kk in range(nkk):
            a(f's_waitcnt lgkmcnt({(nkk-1-kk)*per})')
            for m in range(nmat):
                r = 104 + 16 * m + 4 * kk
                acc = 32 + 16 * m
                cc = '0' if (c == 0 and kk == 0) else f'v[{acc}:{acc+15}]'
                a(f'v_mfma_f32_32x32x16_bf16 v[{acc}:{acc+15}], v[{88+4*kk}:{91+4*kk}], v[{r}:{r+3}], {cc}')
    issue_loads(0)
    write_stage(0)
    for c in range(nch):
        if c + 1 < nch: issue_loads(c + 1)
        compute(c)
        if c + 1 < nch: write_stage(c + 1)
    a('s_nop 15')
    a('v_lshrrev_b32 v5, 1, v2')
    a('v_and_b32 v6, 1, v2')
    a('v_lshlrev_b32 v7, 5, v5')
    a('v_lshl_add_u32 v7, v3, 2, v7')
    a('v_add_u32 v7, s24, v7')
    if not kv:
        a(f's_mov_b32 s28, {OS}')
        a('v_mul_lo_u32 v8, v7, s28')
        a('v_lshl_add_u32 v9, v6, 5, v4')
        a('v_add_u32 v9, s25, v9')
        a('v_lshl_add_u32 v8, v9, 1, v8')
        if epi == 'glu':
            a('v_mov_b32 v10, 0xfffffff0')
            a(f'v_cmp_gt_u32 vcc, {F}, v9')
            a('s_nop 1')
            a('v_cndmask_b32 v8, v10, v8, vcc')
        roff = lambda r: (8 * (r >> 2) + (r & 3)) * OS
        if epi in ('res',):
            for r in range(16):
                a(f's_mov_b32 s29, {roff(r)}')
                a(f'buffer_load_ushort v{64+r}, v8, s[20:23], s29 offen')
            a('s_waitcnt vmcnt(0)')
            for r in range(16):
                a(f'v_lshlrev_b32 v{64+r}, 16, v{64+r}')
                a(f'v_add_f32 v{32+r}, v{32+r}, v{64+r}')
        elif epi == 'scale':
            a(f's_mov_b32 s28, {fbits(QSCALE)}')
            for r in range(16):
                a(f'v_mul_f32 v{32+r}, s28, v{32+r}')
        elif epi == 'glu':
            a(f's_mov_b32 s28, {fbits(-1.4426950408889634)}')
            for r in range(16):
                a(f'v_mul_f32 v{64+r}, s28, v{32+r}')
                a(f'v_exp_f32 v{64+r}, v{64+r}')
                a('s_nop 0')
                a(f'v_add_f32 v{64+r}, 1.0, v{64+r}')
                a(f'v_rcp_f32 v{64+r}, v{64+r}')
                a('s_nop 0')
                a(f'v_mul_f32 v{32+r}, v{32+r}, v{64+r}')
                a(f'v_mul_f32 v{32+r}, v{32+r}, v{48+r}')
        for r in range(16):
            a(f'v_cvt_pk_bf16_f32 v{32+r}, v{32+r}, v{32+r}')
            a(f's_mov_b32 s29, {roff(r)}')
            a(f'buffer_store_short v{32+r}, v8, s[16:19], s29 offen')
    else:
        a('v_cmp_eq_u32 vcc, 0, v6')
        a(f's_and_saveexec_b64 s[32:33], vcc')
        a(f's_cbranch_execz L_{tag}_done')
        a('v_lshlrev_b32 v8, 5, v7')
        a('v_and_b32 v9, 15, v1')
        a('v_lshl_add_u32 v8, v9, 1, v8')
        for r in range(16):
            a(f'v_cvt_pk_bf16_f32 v{64+r}, v{32+r}, v{32+r}')
        a('v_cmp_gt_u32 vcc, 16, v4')
        a('s_and_saveexec_b64 s[34:35], vcc')
        for r in range(16):
            a(f'buffer_store_short v{64+r}, v8, s[16:19], 0 offen offset:{(8*(r>>2)+(r&3))*32}')
        a('s_mov_b64 exec, s[34:35]')
        a('v_lshrrev_b32 v8, 5, v7')
        a('v_lshlrev_b32 v8, 2, v8')
        a('v_add_u32 v8, v8, v3')
        a('v_lshlrev_b32 v8, 4, v8')
        a('v_add_u32 v8, v8, v9')
        a('v_lshlrev_b32 v8, 4, v8')
        for t in range(2):
            for q in range(4):
                a(f'v_cvt_pk_bf16_f32 v{80+4*t+q}, v{32+8*t+2*q}, v{33+8*t+2*q}')
        a('v_cmp_le_u32 vcc, 16, v4')
        a('s_and_saveexec_b64 s[34:35], vcc')
        for t in range(2):
            a(f's_mov_b32 s29, {WS_V-WS_K + t*512}')
            a(f'buffer_store_dwordx4 v[{80+4*t}:{83+4*t}], v8, s[16:19], s29 offen')
        a('s_mov_b64 exec, s[34:35]')
        a.label(f'L_{tag}_done')
        a('s_mov_b64 exec, s[32:33]')

def kdesc(name, vgpr, sgpr=48):
    return f'''.amdhsa_kernel {name}
  .amdhsa_next_free_vgpr {vgpr}
  .amdhsa_next_free_sgpr {sgpr}
  .amdhsa_accum_offset {(vgpr+3)//4*4}
  .amdhsa_group_segment_fixed_size 0
  .amdhsa_kernarg_size 96
  .amdhsa_user_sgpr_count 2
  .amdhsa_user_sgpr_kernarg_segment_ptr 1
  .amdhsa_system_sgpr_workgroup_id_x 1
.end_amdhsa_kernel
'''

def khead(a, name, nwg):
    a.raw('.p2align 8')
    a.raw(f'.globl {name}')
    a.raw(f'.type {name},@function')
    a.label(name)
    a(f's_cmp_ge_u32 s2, {nwg}')
    a(f's_cbranch_scc1 L_{name}_end')

def kend(a, name):
    a.label(f'L_{name}_end')
    a('s_endpgm')

def rowcol(a):
    a('s_and_b32 s24, s2, 31')
    a('s_lshl_b32 s24, s24, 6')
    a('s_lshr_b32 s25, s2, 5')
    a('s_lshl_b32 s25, s25, 6')

def k_qkv(a):
    n = 'qkv_kernel'
    khead(a, n, 288)
    rowcol(a)
    a('s_cmp_eq_u32 s25, 512')
    a('s_cbranch_scc1 L_kvtile')
    ts = [srd(a, 4, 0, 0, S*D*2), srd(a, 8, 8, 0, D*D*2), srd(a, 16, 88, WS_Q, S*D*2)]
    a('s_waitcnt lgkmcnt(0)')
    for t in ts: srd_fin(a, t)
    a('s_mov_b32 s26, 1024'); a('s_mov_b32 s27, 1024')
    gemm_body(a, 'q', 64, 512, 1024, 1024, 1024, True, 1, 'scale')
    a('s_endpgm')
    a.label('L_kvtile')
    ts = [srd(a, 4, 0, 0, S*D*2), srd(a, 8, 16, 0, D*16*2), srd(a, 12, 24, 0, D*16*2), srd(a, 16, 88, WS_K, 0x20000)]
    a('s_waitcnt lgkmcnt(0)')
    for t in ts: srd_fin(a, t)
    a('s_mov_b32 s26, 1024'); a('s_mov_b32 s27, 32')
    gemm_body(a, 'kv', 64, 512, 1024, 32, 0, True, 1, None, kv=True)
    kend(a, n)

def k_oproj(a):
    n = 'oproj_kernel'
    khead(a, n, 256)
    rowcol(a)
    ts = [srd(a, 4, 88, WS_O, S*D*2), srd(a, 8, 32, 0, D*D*2), srd(a, 16, 88, WS_H, S*D*2), srd(a, 20, 0, 0, S*D*2)]
    a('s_waitcnt lgkmcnt(0)')
    for t in ts: srd_fin(a, t)
    a('s_mov_b32 s26, 1024'); a('s_mov_b32 s27, 1024')
    gemm_body(a, 'o', 64, 512, 1024, 1024, 1024, False, 1, 'res')
    kend(a, n)

def k_glu(a):
    n = 'glu_kernel'
    khead(a, n, 32*22)
    rowcol(a)
    ts = [srd(a, 4, 88, WS_H, S*D*2), srd(a, 8, 48, 0, D*F*2), srd(a, 12, 56, 0, D*F*2), srd(a, 16, 88, WS_G, S*F*2)]
    a('s_waitcnt lgkmcnt(0)')
    for t in ts: srd_fin(a, t)
    a('s_mov_b32 s26, 1024'); a(f's_mov_b32 s27, {F*2}')
    gemm_body(a, 'g', 64, 512, 1024, F*2, F*2, True, 2, 'glu')
    kend(a, n)

def k_down(a):
    n = 'down_kernel'
    khead(a, n, 256)
    rowcol(a)
    ts = [srd(a, 4, 88, WS_G, S*F*2), srd(a, 8, 64, 0, F*D*2), srd(a, 16, 72, 0, S*D*2), srd(a, 20, 88, WS_H, S*D*2)]
    a('s_waitcnt lgkmcnt(0)')
    for t in ts: srd_fin(a, t)
    a(f's_mov_b32 s26, {F*2}'); a('s_mov_b32 s27, 1024')
    gemm_body(a, 'd', 32, F, F*2, 1024, 1024, False, 1, 'res')
    kend(a, n)

def k_attn(a):
    n = 'attn_kernel'
    khead(a, n, 256)
    ts = [srd(a, 4, 88, WS_Q, S*D*2), srd(a, 8, 88, WS_K, 0x20000), srd(a, 12, 88, WS_O, S*D*2)]
    a('s_waitcnt lgkmcnt(0)')
    for t in ts: srd_fin(a, t)
    a('v_and_b32 v1, 63, v0')
    a('v_lshrrev_b32 v2, 6, v0')
    a('v_lshlrev_b32 v3, 4, v0')
    for i in range(16):
        a(f's_mov_b32 s20, {i*8192}')
        a(f'buffer_load_dwordx4 v[{36+4*i}:{39+4*i}], v3, s[8:11], s20 offen')
    a('s_lshr_b32 s21, s2, 3')
    a('s_and_b32 s22, s2, 7')
    a('s_lshl_b32 s22, s22, 8')
    a('v_and_b32 v8, 31, v1')
    a('v_lshl_add_u32 v9, v2, 5, v8')
    a('v_add_u32 v9, s22, v9')
    a('v_lshlrev_b32 v110, 10, v9')
    a('s_lshl_b32 s23, s21, 5')
    a('v_add_u32 v110, s23, v110')
    a('v_lshrrev_b32 v111, 5, v1')
    a('v_lshl_add_u32 v9, v111, 4, v110')
    a('buffer_load_dwordx4 v[4:7], v9, s[4:7], 0 offen')
    a('v_mov_b32 v100, 0x3f803f80')
    for q in range(1, 4): a(f'v_mov_b32 v{100+q}, v100')
    a('v_add_u32 v104, 0x20000, v3')
    a('v_add_u32 v105, 0x10000, v3')
    a('v_cmp_gt_u32 vcc, 64, v0')
    a('s_and_saveexec_b64 s[24:25], vcc')
    a('ds_write_b128 v104, v[100:103]')
    a('s_mov_b64 exec, s[24:25]')
    a('s_waitcnt vmcnt(1)')
    for i in range(16):
        if i < 8: a(f'ds_write_b128 v3, v[{36+4*i}:{39+4*i}] offset:{i*8192}')
        else: a(f'ds_write_b128 v105, v[{36+4*i}:{39+4*i}] offset:{(i-8)*8192}')
    a('v_lshlrev_b32 v112, 5, v8')
    a('v_lshl_add_u32 v112, v111, 4, v112')
    a('v_and_b32 v113, 15, v1')
    a('v_lshl_add_u32 v113, v111, 4, v113')
    a('v_lshlrev_b32 v113, 4, v113')
    a('v_add_u32 v113, 0x10000, v113')
    a('v_mov_b32 v114, 0x20000')
    a('v_mov_b32 v115, 1024')
    a('v_cmp_gt_u32 vcc, 16, v8')
    a('s_nop 1')
    a('v_cndmask_b32 v113, v114, v113, vcc')
    a('v_cndmask_b32 v115, 0, v115, vcc')
    a('v_mov_b32 v11, 0xff800000')
    a('s_waitcnt vmcnt(0) lgkmcnt(0)')
    a('s_barrier')
    KF = [12, 16]; VF = [20, 28]; SB = [36, 52]; C = 68; P = 84; O = 92
    NT = 64
    a(f'ds_read_b128 v[{KF[0]}:{KF[0]+3}], v112 offset:0')
    a(f'ds_read_b128 v[{KF[1]}:{KF[1]+3}], v112 offset:1024')
    for T in range(NT + 1):
        if T < NT:
            a(f's_waitcnt lgkmcnt({1 if T + 1 < NT else 0})')
            sb = SB[T & 1]; kf = KF[T & 1]
            a(f'v_mfma_f32_32x32x16_bf16 v[{sb}:{sb+15}], v[{kf}:{kf+3}], v[4:7], 0')
            if T + 2 < NT:
                a(f'ds_read_b128 v[{kf}:{kf+3}], v112 offset:{(T+2)*1024}')
            else:
                a('s_nop 0')
        else:
            a('s_nop 7'); a('s_nop 7')
        if T >= 1:
            sb = SB[(T - 1) & 1]
            for q in range(8):
                a(f'v_max3_f32 v11, v11, v{sb+2*q}, v{sb+2*q+1}')
    a('v_mov_b32 v10, v11')
    a('s_nop 1')
    a('v_permlane32_swap_b32 v11, v10')
    a('v_max_f32 v11, v11, v10')
    for q in range(16):
        a(f'v_sub_f32 v{C+q}, 0, v11')
    a(f'ds_read_b128 v[{KF[0]}:{KF[0]+3}], v112 offset:0')
    a('s_waitcnt lgkmcnt(0)')
    a(f'v_mfma_f32_32x32x16_bf16 v[{SB[0]}:{SB[0]+15}], v[{KF[0]}:{KF[0]+3}], v[4:7], v[{C}:{C+15}]')
    a(f'ds_read_b128 v[{KF[1]}:{KF[1]+3}], v112 offset:1024')
    a(f'ds_read_b128 v[{VF[0]}:{VF[0]+3}], v113 offset:0')
    a(f'ds_read_b128 v[{VF[0]+4}:{VF[0]+7}], v113 offset:512')
    a('v_add_u32 v113, v113, v115')
    for T in range(NT):
        sb = SB[T & 1]; vf = VF[T & 1]
        if T + 1 < NT:
            a('s_waitcnt lgkmcnt(2)')
            sn = SB[(T + 1) & 1]; kf = KF[(T + 1) & 1]
            a(f'v_mfma_f32_32x32x16_bf16 v[{sn}:{sn+15}], v[{kf}:{kf+3}], v[4:7], v[{C}:{C+15}]')
            if T + 2 < NT:
                kf2 = KF[T & 1]
                a(f'ds_read_b128 v[{kf2}:{kf2+3}], v112 offset:{(T+2)*1024}')
        else:
            a('s_nop 7')
        for q in range(16):
            a(f'v_exp_f32 v{sb+q}, v{sb+q}')
        for q in range(8):
            a(f'v_cvt_pk_bf16_f32 v{P+q}, v{sb+2*q}, v{sb+2*q+1}')
        a(f's_waitcnt lgkmcnt({1 if T + 2 < NT else 0})')
        a('s_nop 1')
        for t in range(2):
            cc = '0' if (T == 0 and t == 0) else f'v[{O}:{O+15}]'
            a(f'v_mfma_f32_32x32x16_bf16 v[{O}:{O+15}], v[{vf+4*t}:{vf+4*t+3}], v[{P+4*t}:{P+4*t+3}], {cc}')
        if T + 1 < NT:
            vn = VF[(T + 1) & 1]
            a(f'ds_read_b128 v[{vn}:{vn+3}], v113 offset:0')
            a(f'ds_read_b128 v[{vn+4}:{vn+7}], v113 offset:512')
            a('v_add_u32 v113, v113, v115')
    a('s_nop 15')
    a(f'v_rcp_f32 v36, v{O+8}')
    a('s_nop 0')
    for q in range(8):
        a(f'v_mul_f32 v{O+q}, v{O+q}, v36')
    for q in range(4):
        a(f'v_cvt_pk_bf16_f32 v{40+q}, v{O+2*q}, v{O+2*q+1}')
    a('v_lshl_add_u32 v37, v111, 3, v110')
    a('buffer_store_dwordx2 v[40:41], v37, s[12:15], 0 offen')
    a('buffer_store_dwordx2 v[42:43], v37, s[12:15], 0 offen offset:16')
    kend(a, n)

HEADER = open('cdna_kernels/' + KN + '.s.ref').read().split('; Override')[0]

def build(path):
    a = Asm()
    k_qkv(a); k_attn(a); k_oproj(a); k_glu(a); k_down(a)
    stg1 = 2 * (64*ASL64 + 64*WSL) + 512
    stg2 = 2 * (64*ASL64 + 2*64*WSL) + 512
    stg5 = 2 * (64*ASL32 + 32*WSL) + 512
    out = HEADER
    out += f'; @launch kernel=qkv_kernel grid=(288,1,1) block=(256,1,1) lds={stg1}\n'
    out += f'; @launch kernel=attn_kernel grid=(256,1,1) block=(512,1,1) lds=132096\n'
    out += f'; @launch kernel=oproj_kernel grid=(256,1,1) block=(256,1,1) lds={stg1}\n'
    out += f'; @launch kernel=glu_kernel grid=(704,1,1) block=(256,1,1) lds={stg2}\n'
    out += f'; @launch kernel=down_kernel grid=(256,1,1) block=(256,1,1) lds={stg5}\n'
    out += '.amdgcn_target "amdgcn-amd-amdhsa--gfx950"\n.text\n'
    out += a.text()
    out += '.section .rodata,"a"\n.p2align 6\n'
    for k in ('qkv_kernel', 'oproj_kernel', 'glu_kernel', 'down_kernel'):
        out += kdesc(k, 136)
    out += kdesc('attn_kernel', 116)
    open(path, 'w').write(out)

if __name__ == '__main__':
    build(sys.argv[1] if len(sys.argv) > 1 else 'cdna_kernels/' + KN + '.s')
```

```python
import sys
KN = 'sequential_preLN__grouped_kv_mqa__glu_gated_swiglu__prompt'
S, D, F = 2048, 512, 1376
WS_Q, WS_K, WS_V, WS_O, WS_H, WS_G = 0, 0x200000, 0x210000, 0x300000, 0x500000, 0x700000
QSCALE = 0.25 * 1.4426950408889634
import struct
def fbits(x): return struct.unpack('<I', struct.pack('<f', x))[0]

class Asm:
    def __init__(self): self.lines = []
    def __call__(self, s): self.lines.append('  ' + s)
    def label(self, l): self.lines.append(l + ':')
    def raw(self, s): self.lines.append(s)
    def text(self): return '\n'.join(self.lines) + '\n'

def srd(a, d, kofs, add, size):
    a(f's_load_dwordx2 s[{d}:{d+1}], s[0:1], {kofs}')
    return (d, add, size)
def srd_fin(a, t):
    d, add, size = t
    if add:
        a(f's_add_u32 s{d}, s{d}, {add}')
        a(f's_addc_u32 s{d+1}, s{d+1}, 0')
    a(f's_mov_b32 s{d+2}, {size}')
    a(f's_mov_b32 s{d+3}, 0x00020000')

ASL64, ASL32, WSL = 144, 80, 160

def gemm_body(a, tag, BK, K, AS, WSTR, OS, ln, nmat, epi, kv=False, PD=3):
    nch = K // BK
    ASL = ASL64 if BK == 64 else ASL32
    ASZ = 64 * ASL
    WSZ = BK * WSL
    STG = ASZ + WSZ * nmat
    STATS = 0
    nkk = BK // 16
    a('v_and_b32 v1, 63, v0')
    a('v_lshrrev_b32 v2, 6, v0')
    a('v_lshrrev_b32 v3, 5, v1')
    a('v_and_b32 v4, 31, v1')
    if ln:
        a('v_lshrrev_b32 v5, 4, v1')
        a('v_lshl_add_u32 v5, v2, 4, v5')
        a('v_add_u32 v5, s24, v5')
        a(f'v_mul_lo_u32 v5, v5, s26')
        a('v_and_b32 v6, 15, v1')
        a('v_lshl_add_u32 v5, v6, 4, v5')
        for j in range(4):
            for m in range(4):
                r = 64 + (j * 4 + m) * 4
                a(f's_mov_b32 s30, {4*j*AS}')
                a(f'buffer_load_dwordx4 v[{r}:{r+3}], v5, s[4:7], s30 offen offset:{256*m}')
        a('s_mov_b32 s31, 0x3f803f80')
        a('s_waitcnt vmcnt(0)')
        for j in range(4):
            s1, s2 = 8 + 2 * j, 9 + 2 * j
            for q in range(16):
                r = 64 + j * 16 + q
                a(f'v_dot2_f32_bf16 v{s1}, v{r}, s31, ' + ('0' if q == 0 else f'v{s1}'))
                a(f'v_dot2_f32_bf16 v{s2}, v{r}, v{r}, ' + ('0' if q == 0 else f'v{s2}'))
        for sh in (1, 2, 4, 8):
            for j in range(8):
                a(f'v_add_f32_dpp v{16+j}, v{8+j}, v{8+j} row_ror:{sh} row_mask:0xf bank_mask:0xf')
            for j in range(8):
                a(f'v_mov_b32 v{8+j}, v{16+j}')
        a(f's_mov_b32 s31, {fbits(1.0/512)}')
        a(f's_mov_b32 s30, {fbits(1e-5)}')
        a('v_lshrrev_b32 v6, 4, v1')
        a('v_lshl_add_u32 v6, v2, 4, v6')
        a('v_lshlrev_b32 v6, 3, v6')
        for j in range(4):
            s1, s2 = 8 + 2 * j, 9 + 2 * j
            a(f'v_mul_f32 v{s1}, s31, v{s1}')
            a(f'v_mul_f32 v{s2}, s31, v{s2}')
            a(f'v_fma_f32 v{s2}, -v{s1}, v{s1}, v{s2}')
            a(f'v_max_f32 v{s2}, 0, v{s2}')
            a(f'v_add_f32 v{s2}, s30, v{s2}')
            a(f'v_rsq_f32 v{s2}, v{s2}')
            a('s_nop 0')
            a(f'v_mul_f32 v{s1}, v{s1}, v{s2}')
            a(f'v_sub_f32 v{s1}, 0, v{s1}')
            a(f'ds_write_b64 v6, v[{s1}:{s2}] offset:{STATS + 32*j}')
        a('s_waitcnt lgkmcnt(0)')
        a('s_barrier')
        a('v_lshrrev_b32 v6, 3, v0')
        a('v_lshlrev_b32 v6, 3, v6')
        a(f'ds_read_b64 v[24:25], v6 offset:{STATS}')
        a(f'ds_read_b64 v[26:27], v6 offset:{STATS+256}')
    if BK == 64:
        a('v_lshrrev_b32 v5, 3, v0')
        a('v_and_b32 v6, 7, v0')
        a('v_add_u32 v7, s24, v5')
        a('v_mul_lo_u32 v7, v7, s26')
        a('v_lshl_add_u32 v8, v6, 4, v7')
        a(f'v_add_u32 v9, {32*AS}, v8')
        a(f'v_mul_u32_u24 v10, {ASL}, v5')
        a('v_lshl_add_u32 v10, v6, 4, v10')
    else:
        a('v_lshrrev_b32 v5, 2, v0')
        a('v_and_b32 v6, 3, v0')
        a('v_add_u32 v7, s24, v5')
        a('v_mul_lo_u32 v7, v7, s26')
        a('v_lshl_add_u32 v8, v6, 4, v7')
        a(f'v_mul_u32_u24 v10, {ASL}, v5')
        a('v_lshl_add_u32 v10, v6, 4, v10')
    if not kv:
        a('v_lshrrev_b32 v5, 3, v0')
        a('v_and_b32 v6, 7, v0')
        a('v_mul_lo_u32 v7, v5, s27')
        a('v_lshl_add_u32 v7, v6, 4, v7')
        a('s_lshl_b32 s28, s25, 1')
        a('v_add_u32 v11, s28, v7')
        a(f'v_add_u32 v12, {32*WSTR}, v11')
        a(f'v_mul_u32_u24 v13, {WSL}, v5')
        a('v_lshl_add_u32 v13, v6, 4, v13')
    else:
        a('v_lshrrev_b32 v5, 2, v0')
        a('v_and_b32 v6, 3, v0')
        a('v_lshlrev_b32 v7, 5, v5')
        a('v_and_b32 v14, 1, v6')
        a('v_lshl_add_u32 v7, v14, 4, v7')
        a('v_mov_b32 v14, 0xfffffff0')
        a('v_cmp_gt_u32 vcc, 2, v6')
        a('s_nop 1')
        a('v_cndmask_b32 v11, v14, v7, vcc')
        a('v_cndmask_b32 v12, v7, v14, vcc')
        a(f'v_mul_u32_u24 v13, {WSL}, v5')
        a('v_lshl_add_u32 v13, v6, 4, v13')
    a('v_lshrrev_b32 v5, 1, v2')
    a('v_and_b32 v6, 1, v2')
    a('v_lshl_add_u32 v7, v5, 5, v4')
    a(f'v_mul_u32_u24 v14, {ASL}, v7')
    a('v_lshl_add_u32 v14, v3, 4, v14')
    a('v_and_b32 v7, 15, v1')
    a('v_lshrrev_b32 v7, 2, v7')
    a('v_lshl_add_u32 v7, v3, 3, v7')
    a(f'v_mul_u32_u24 v15, {WSL}, v7')
    a('v_lshl_add_u32 v15, v6, 6, v15')
    a('v_lshrrev_b32 v7, 4, v1')
    a('v_and_b32 v7, 1, v7')
    a('v_lshl_add_u32 v15, v7, 5, v15')
    a('v_and_b32 v7, 3, v1')
    a('v_lshl_add_u32 v15, v7, 3, v15')
    if ln:
        a('s_waitcnt lgkmcnt(0)')
    npa = 2 if BK == 64 else 1
    npw = BK // 32
    SPER = 4 * npa + 4 * npw * nmat + (4 if kv else 0)
    def sb_(c): return 136 + (c % PD) * SPER
    NL = npa + (2 if kv else npw * nmat)
    def issue_loads(c):
        b = sb_(c)
        for i in range(npa):
            a(f'buffer_load_dwordx4 v[{b+4*i}:{b+3+4*i}], v{8+i}, s[4:7], 0 offen offset:{c*BK*2}')
        a(f's_mov_b32 s29, {c*BK*WSTR}')
        w = b + 4 * npa
        if not kv:
            for m in range(nmat):
                for i in range(npw):
                    r = w + 4 * (m * npw + i)
                    a(f'buffer_load_dwordx4 v[{r}:{r+3}], v{11+i}, s[{8+4*m}:{11+4*m}], s29 offen')
        else:
            a(f'buffer_load_dwordx4 v[{w}:{w+3}], v11, s[8:11], s29 offen')
            a(f'buffer_load_dwordx4 v[{w+4}:{w+7}], v12, s[12:15], s29 offen')
    def write_stage(c):
        base = 512 + (c & 1) * STG
        b = sb_(c); w = b + 4 * npa
        later = min(nch - 1, c + PD - 1) - c
        a(f's_waitcnt vmcnt({later*NL})')
        if ln:
            for i in range(2):
                for q in range(4):
                    r = b + 4 * i + q
                    a(f'v_lshlrev_b32 v28, 16, v{r}')
                    a(f'v_and_b32 v29, 0xffff0000, v{r}')
                    a(f'v_fma_f32 v28, v28, v{25+2*i}, v{24+2*i}')
                    a(f'v_fma_f32 v29, v29, v{25+2*i}, v{24+2*i}')
                    a(f'v_cvt_pk_bf16_f32 v{r}, v28, v29')
        for i in range(npa):
            a(f'ds_write_b128 v10, v[{b+4*i}:{b+3+4*i}] offset:{base + i*32*ASL}')
        if kv:
            for q in range(4):
                a(f'v_or_b32 v{w+q}, v{w+q}, v{w+4+q}')
            a(f'ds_write_b128 v13, v[{w}:{w+3}] offset:{base + ASZ}')
        else:
            for m in range(nmat):
                for i in range(npw):
                    r = w + 4 * (m * npw + i)
                    a(f'ds_write_b128 v13, v[{r}:{r+3}] offset:{base + ASZ + m*WSZ + i*32*WSL}')
        a('s_waitcnt lgkmcnt(0)')
        a('s_barrier')
    def compute(c):
        base = 512 + (c & 1) * STG
        for kk in range(nkk):
            a(f'ds_read_b128 v[{88+4*kk}:{91+4*kk}], v14 offset:{base + kk*32}')
            for m in range(nmat):
                r = 104 + 16 * m + 4 * kk
                o = base + ASZ + m * WSZ + kk * 16 * WSL
                a(f'ds_read_b64_tr_b16 v[{r}:{r+1}], v15 offset:{o}')
                a(f'ds_read_b64_tr_b16 v[{r+2}:{r+3}], v15 offset:{o + 4*WSL}')
        per = 1 + 2 * nmat
        for kk in range(nkk):
            a(f's_waitcnt lgkmcnt({(nkk-1-kk)*per})')
            for m in range(nmat):
                r = 104 + 16 * m + 4 * kk
                acc = 32 + 16 * m
                cc = '0' if (c == 0 and kk == 0) else f'v[{acc}:{acc+15}]'
                a(f'v_mfma_f32_32x32x16_bf16 v[{acc}:{acc+15}], v[{88+4*kk}:{91+4*kk}], v[{r}:{r+3}], {cc}')
    for c in range(min(PD, nch)): issue_loads(c)
    write_stage(0)
    for c in range(nch):
        if c + PD < nch: issue_loads(c + PD)
        compute(c)
        if c + 1 < nch: write_stage(c + 1)
    a('s_nop 15')
    a('v_lshrrev_b32 v5, 1, v2')
    a('v_and_b32 v6, 1, v2')
    a('v_lshlrev_b32 v7, 5, v5')
    a('v_lshl_add_u32 v7, v3, 2, v7')
    a('v_add_u32 v7, s24, v7')
    if not kv:
        a(f's_mov_b32 s28, {OS}')
        a('v_mul_lo_u32 v8, v7, s28')
        a('v_lshl_add_u32 v9, v6, 5, v4')
        a('v_add_u32 v9, s25, v9')
        a('v_lshl_add_u32 v8, v9, 1, v8')
        if epi == 'glu':
            a('v_mov_b32 v10, 0xfffffff0')
            a(f'v_cmp_gt_u32 vcc, {F}, v9')
            a('s_nop 1')
            a('v_cndmask_b32 v8, v10, v8, vcc')
        roff = lambda r: (8 * (r >> 2) + (r & 3)) * OS
        if epi in ('res',):
            for r in range(16):
                a(f's_mov_b32 s29, {roff(r)}')
                a(f'buffer_load_ushort v{64+r}, v8, s[20:23], s29 offen')
            a('s_waitcnt vmcnt(0)')
            for r in range(16):
                a(f'v_lshlrev_b32 v{64+r}, 16, v{64+r}')
                a(f'v_add_f32 v{32+r}, v{32+r}, v{64+r}')
        elif epi == 'scale':
            a(f's_mov_b32 s28, {fbits(QSCALE)}')
            for r in range(16):
                a(f'v_mul_f32 v{32+r}, s28, v{32+r}')
        elif epi == 'glu':
            a(f's_mov_b32 s28, {fbits(-1.4426950408889634)}')
            for r in range(16):
                a(f'v_mul_f32 v{64+r}, s28, v{32+r}')
                a(f'v_exp_f32 v{64+r}, v{64+r}')
                a('s_nop 0')
                a(f'v_add_f32 v{64+r}, 1.0, v{64+r}')
                a(f'v_rcp_f32 v{64+r}, v{64+r}')
                a('s_nop 0')
                a(f'v_mul_f32 v{32+r}, v{32+r}, v{64+r}')
                a(f'v_mul_f32 v{32+r}, v{32+r}, v{48+r}')
        for r in range(16):
            a(f'v_cvt_pk_bf16_f32 v{32+r}, v{32+r}, v{32+r}')
            a(f's_mov_b32 s29, {roff(r)}')
            a(f'buffer_store_short v{32+r}, v8, s[16:19], s29 offen')
    else:
        a('v_cmp_eq_u32 vcc, 0, v6')
        a(f's_and_saveexec_b64 s[32:33], vcc')
        a(f's_cbranch_execz L_{tag}_done')
        a('v_lshlrev_b32 v8, 5, v7')
        a('v_and_b32 v9, 15, v1')
        a('v_lshl_add_u32 v8, v9, 1, v8')
        for r in range(16):
            a(f'v_cvt_pk_bf16_f32 v{64+r}, v{32+r}, v{32+r}')
        a('v_cmp_gt_u32 vcc, 16, v4')
        a('s_and_saveexec_b64 s[34:35], vcc')
        for r in range(16):
            a(f'buffer_store_short v{64+r}, v8, s[16:19], 0 offen offset:{(8*(r>>2)+(r&3))*32}')
        a('s_mov_b64 exec, s[34:35]')
        a('v_lshrrev_b32 v8, 5, v7')
        a('v_lshlrev_b32 v8, 2, v8')
        a('v_add_u32 v8, v8, v3')
        a('v_lshlrev_b32 v8, 4, v8')
        a('v_add_u32 v8, v8, v9')
        a('v_lshlrev_b32 v8, 4, v8')
        for t in range(2):
            for q in range(4):
                a(f'v_cvt_pk_bf16_f32 v{80+4*t+q}, v{32+8*t+2*q}, v{33+8*t+2*q}')
        a('v_cmp_le_u32 vcc, 16, v4')
        a('s_and_saveexec_b64 s[34:35], vcc')
        for t in range(2):
            a(f's_mov_b32 s29, {WS_V-WS_K + t*512}')
            a(f'buffer_store_dwordx4 v[{80+4*t}:{83+4*t}], v8, s[16:19], s29 offen')
        a('s_mov_b64 exec, s[34:35]')
        a.label(f'L_{tag}_done')
        a('s_mov_b64 exec, s[32:33]')

def kdesc(name, vgpr, sgpr=48):
    return f'''.amdhsa_kernel {name}
  .amdhsa_next_free_vgpr {vgpr}
  .amdhsa_next_free_sgpr {sgpr}
  .amdhsa_accum_offset {(vgpr+3)//4*4}
  .amdhsa_group_segment_fixed_size 0
  .amdhsa_kernarg_size 96
  .amdhsa_user_sgpr_count 2
  .amdhsa_user_sgpr_kernarg_segment_ptr 1
  .amdhsa_system_sgpr_workgroup_id_x 1
.end_amdhsa_kernel
'''

def khead(a, name, nwg):
    a.raw('.p2align 8')
    a.raw(f'.globl {name}')
    a.raw(f'.type {name},@function')
    a.label(name)
    a(f's_cmp_ge_u32 s2, {nwg}')
    a(f's_cbranch_scc1 L_{name}_end')

def kend(a, name):
    a.label(f'L_{name}_end')
    a('s_endpgm')

def rowcol(a):
    a('s_and_b32 s24, s2, 31')
    a('s_lshl_b32 s24, s24, 6')
    a('s_lshr_b32 s25, s2, 5')
    a('s_lshl_b32 s25, s25, 6')

def k_qkv(a):
    n = 'qkv_kernel'
    khead(a, n, 288)
    rowcol(a)
    a('s_cmp_eq_u32 s25, 512')
    a('s_cbranch_scc1 L_kvtile')
    ts = [srd(a, 4, 0, 0, S*D*2), srd(a, 8, 8, 0, D*D*2), srd(a, 16, 88, WS_Q, S*D*2)]
    a('s_waitcnt lgkmcnt(0)')
    for t in ts: srd_fin(a, t)
    a('s_mov_b32 s26, 1024'); a('s_mov_b32 s27, 1024')
    gemm_body(a, 'q', 64, 512, 1024, 1024, 1024, True, 1, 'scale')
    a('s_endpgm')
    a.label('L_kvtile')
    ts = [srd(a, 4, 0, 0, S*D*2), srd(a, 8, 16, 0, D*16*2), srd(a, 12, 24, 0, D*16*2), srd(a, 16, 88, WS_K, 0x20000)]
    a('s_waitcnt lgkmcnt(0)')
    for t in ts: srd_fin(a, t)
    a('s_mov_b32 s26, 1024'); a('s_mov_b32 s27, 32')
    gemm_body(a, 'kv', 64, 512, 1024, 32, 0, True, 1, None, kv=True)
    kend(a, n)

def k_oproj(a):
    n = 'oproj_kernel'
    khead(a, n, 256)
    rowcol(a)
    ts = [srd(a, 4, 88, WS_O, S*D*2), srd(a, 8, 32, 0, D*D*2), srd(a, 16, 88, WS_H, S*D*2), srd(a, 20, 0, 0, S*D*2)]
    a('s_waitcnt lgkmcnt(0)')
    for t in ts: srd_fin(a, t)
    a('s_mov_b32 s26, 1024'); a('s_mov_b32 s27, 1024')
    gemm_body(a, 'o', 64, 512, 1024, 1024, 1024, False, 1, 'res', PD=3)
    kend(a, n)

def k_glu(a):
    n = 'glu_kernel'
    khead(a, n, 32*22)
    rowcol(a)
    ts = [srd(a, 4, 88, WS_H, S*D*2), srd(a, 8, 48, 0, D*F*2), srd(a, 12, 56, 0, D*F*2), srd(a, 16, 88, WS_G, S*F*2)]
    a('s_waitcnt lgkmcnt(0)')
    for t in ts: srd_fin(a, t)
    a('s_mov_b32 s26, 1024'); a(f's_mov_b32 s27, {F*2}')
    gemm_body(a, 'g', 64, 512, 1024, F*2, F*2, True, 2, 'glu', PD=2)
    kend(a, n)

def k_down(a):
    n = 'down_kernel'
    khead(a, n, 256)
    rowcol(a)
    ts = [srd(a, 4, 88, WS_G, S*F*2), srd(a, 8, 64, 0, F*D*2), srd(a, 16, 72, 0, S*D*2), srd(a, 20, 88, WS_H, S*D*2)]
    a('s_waitcnt lgkmcnt(0)')
    for t in ts: srd_fin(a, t)
    a(f's_mov_b32 s26, {F*2}'); a('s_mov_b32 s27, 1024')
    gemm_body(a, 'd', 32, F, F*2, 1024, 1024, False, 1, 'res', PD=6)
    kend(a, n)

def k_attn(a):
    n = 'attn_kernel'
    khead(a, n, 256)
    ts = [srd(a, 4, 88, WS_Q, S*D*2), srd(a, 8, 88, WS_K, 0x20000), srd(a, 12, 88, WS_O, S*D*2)]
    a('s_waitcnt lgkmcnt(0)')
    for t in ts: srd_fin(a, t)
    a('v_and_b32 v1, 63, v0')
    a('v_lshrrev_b32 v2, 6, v0')
    a('v_lshlrev_b32 v3, 4, v0')
    for i in range(16):
        a(f's_mov_b32 s20, {i*8192}')
        a(f'buffer_load_dwordx4 v[{36+4*i}:{39+4*i}], v3, s[8:11], s20 offen')
    a('s_lshr_b32 s21, s2, 3')
    a('s_and_b32 s22, s2, 7')
    a('s_lshl_b32 s22, s22, 8')
    a('v_and_b32 v8, 31, v1')
    a('v_lshl_add_u32 v9, v2, 5, v8')
    a('v_add_u32 v9, s22, v9')
    a('v_lshlrev_b32 v110, 10, v9')
    a('s_lshl_b32 s23, s21, 5')
    a('v_add_u32 v110, s23, v110')
    a('v_lshrrev_b32 v111, 5, v1')
    a('v_lshl_add_u32 v9, v111, 4, v110')
    a('buffer_load_dwordx4 v[4:7], v9, s[4:7], 0 offen')
    a('v_mov_b32 v100, 0x3f803f80')
    for q in range(1, 4): a(f'v_mov_b32 v{100+q}, v100')
    a('v_add_u32 v104, 0x20000, v3')
    a('v_add_u32 v105, 0x10000, v3')
    a('v_cmp_gt_u32 vcc, 64, v0')
    a('s_and_saveexec_b64 s[24:25], vcc')
    a('ds_write_b128 v104, v[100:103]')
    a('s_mov_b64 exec, s[24:25]')
    a('s_waitcnt vmcnt(1)')
    for i in range(16):
        if i < 8: a(f'ds_write_b128 v3, v[{36+4*i}:{39+4*i}] offset:{i*8192}')
        else: a(f'ds_write_b128 v105, v[{36+4*i}:{39+4*i}] offset:{(i-8)*8192}')
    a('v_lshlrev_b32 v112, 5, v8')
    a('v_lshl_add_u32 v112, v111, 4, v112')
    a('v_and_b32 v113, 15, v1')
    a('v_lshl_add_u32 v113, v111, 4, v113')
    a('v_lshlrev_b32 v113, 4, v113')
    a('v_add_u32 v113, 0x10000, v113')
    a('v_mov_b32 v114, 0x20000')
    a('v_mov_b32 v115, 1024')
    a('v_cmp_gt_u32 vcc, 16, v8')
    a('s_nop 1')
    a('v_cndmask_b32 v113, v114, v113, vcc')
    a('v_cndmask_b32 v115, 0, v115, vcc')
    a('v_mov_b32 v11, 0xff800000')
    a('s_waitcnt vmcnt(0) lgkmcnt(0)')
    a('s_barrier')
    KF = [12, 16]; VF = [20, 28]; SB = [36, 52]; C = 68; P = 84; O = 92
    NT = 64
    a(f'ds_read_b128 v[{KF[0]}:{KF[0]+3}], v112 offset:0')
    a(f'ds_read_b128 v[{KF[1]}:{KF[1]+3}], v112 offset:1024')
    for T in range(NT + 1):
        if T < NT:
            a(f's_waitcnt lgkmcnt({1 if T + 1 < NT else 0})')
            sb = SB[T & 1]; kf = KF[T & 1]
            a(f'v_mfma_f32_32x32x16_bf16 v[{sb}:{sb+15}], v[{kf}:{kf+3}], v[4:7], 0')
            if T + 2 < NT:
                a(f'ds_read_b128 v[{kf}:{kf+3}], v112 offset:{(T+2)*1024}')
            else:
                a('s_nop 0')
        else:
            a('s_nop 7'); a('s_nop 7')
        if T >= 1:
            sb = SB[(T - 1) & 1]
            for q in range(8):
                a(f'v_max3_f32 v11, v11, v{sb+2*q}, v{sb+2*q+1}')
    a('v_mov_b32 v10, v11')
    a('s_nop 1')
    a('v_permlane32_swap_b32 v11, v10')
    a('v_max_f32 v11, v11, v10')
    for q in range(16):
        a(f'v_sub_f32 v{C+q}, 0, v11')
    a(f'ds_read_b128 v[{KF[0]}:{KF[0]+3}], v112 offset:0')
    a('s_waitcnt lgkmcnt(0)')
    a(f'v_mfma_f32_32x32x16_bf16 v[{SB[0]}:{SB[0]+15}], v[{KF[0]}:{KF[0]+3}], v[4:7], v[{C}:{C+15}]')
    a(f'ds_read_b128 v[{KF[1]}:{KF[1]+3}], v112 offset:1024')
    a(f'ds_read_b128 v[{VF[0]}:{VF[0]+3}], v113 offset:0')
    a(f'ds_read_b128 v[{VF[0]+4}:{VF[0]+7}], v113 offset:512')
    a('v_add_u32 v113, v113, v115')
    for T in range(NT):
        sb = SB[T & 1]; vf = VF[T & 1]
        if T + 1 < NT:
            a('s_waitcnt lgkmcnt(2)')
            sn = SB[(T + 1) & 1]; kf = KF[(T + 1) & 1]
            a(f'v_mfma_f32_32x32x16_bf16 v[{sn}:{sn+15}], v[{kf}:{kf+3}], v[4:7], v[{C}:{C+15}]')
            if T + 2 < NT:
                kf2 = KF[T & 1]
                a(f'ds_read_b128 v[{kf2}:{kf2+3}], v112 offset:{(T+2)*1024}')
        else:
            a('s_nop 7')
        for q in range(16):
            a(f'v_exp_f32 v{sb+q}, v{sb+q}')
        for q in range(8):
            a(f'v_cvt_pk_bf16_f32 v{P+q}, v{sb+2*q}, v{sb+2*q+1}')
        a(f's_waitcnt lgkmcnt({1 if T + 2 < NT else 0})')
        a('s_nop 1')
        for t in range(2):
            cc = '0' if (T == 0 and t == 0) else f'v[{O}:{O+15}]'
            a(f'v_mfma_f32_32x32x16_bf16 v[{O}:{O+15}], v[{vf+4*t}:{vf+4*t+3}], v[{P+4*t}:{P+4*t+3}], {cc}')
        if T + 1 < NT:
            vn = VF[(T + 1) & 1]
            a(f'ds_read_b128 v[{vn}:{vn+3}], v113 offset:0')
            a(f'ds_read_b128 v[{vn+4}:{vn+7}], v113 offset:512')
            a('v_add_u32 v113, v113, v115')
    a('s_nop 15')
    a(f'v_rcp_f32 v36, v{O+8}')
    a('s_nop 0')
    for q in range(8):
        a(f'v_mul_f32 v{O+q}, v{O+q}, v36')
    for q in range(4):
        a(f'v_cvt_pk_bf16_f32 v{40+q}, v{O+2*q}, v{O+2*q+1}')
    a('v_lshl_add_u32 v37, v111, 3, v110')
    a('buffer_store_dwordx2 v[40:41], v37, s[12:15], 0 offen')
    a('buffer_store_dwordx2 v[42:43], v37, s[12:15], 0 offen offset:16')
    kend(a, n)

HEADER = open('cdna_kernels/' + KN + '.s.ref').read().split('; Override')[0]

def build(path):
    a = Asm()
    k_qkv(a); k_attn(a); k_oproj(a); k_glu(a); k_down(a)
    stg1 = 2 * (64*ASL64 + 64*WSL) + 512
    stg2 = 2 * (64*ASL64 + 2*64*WSL) + 512
    stg5 = 2 * (64*ASL32 + 32*WSL) + 512
    out = HEADER
    out += f'; @launch kernel=qkv_kernel grid=(288,1,1) block=(256,1,1) lds={stg1}\n'
    out += f'; @launch kernel=attn_kernel grid=(256,1,1) block=(512,1,1) lds=132096\n'
    out += f'; @launch kernel=oproj_kernel grid=(256,1,1) block=(256,1,1) lds={stg1}\n'
    out += f'; @launch kernel=glu_kernel grid=(704,1,1) block=(256,1,1) lds={stg2}\n'
    out += f'; @launch kernel=down_kernel grid=(256,1,1) block=(256,1,1) lds={stg5}\n'
    out += '.amdgcn_target "amdgcn-amd-amdhsa--gfx950"\n.text\n'
    out += a.text()
    out += '.section .rodata,"a"\n.p2align 6\n'
    for k in ('qkv_kernel', 'oproj_kernel', 'glu_kernel', 'down_kernel'):
        out += kdesc(k, 188)
    out += kdesc('attn_kernel', 116)
    open(path, 'w').write(out)

if __name__ == '__main__':
    build(sys.argv[1] if len(sys.argv) > 1 else 'cdna_kernels/' + KN + '.s')
```
